```python
import torch

def _softmax(x, axis=-1):
    return torch.softmax(x, dim=axis)
def _gelu(x):
    return torch.nn.functional.gelu(x, approximate="tanh")
def _silu(x):
    return torch.nn.functional.silu(x)
def _sigmoid(x):
    return torch.sigmoid(x)
def _layernorm(x, axis=-1, eps=1e-5):
    m = x.mean(dim=axis, keepdim=True)
    v = x.var(dim=axis, keepdim=True, unbiased=False)
    return (x - m) / torch.sqrt(v + eps)
def _scatter_add(tgt, idx, src, axis=0):
    return tgt.clone().index_add_(axis, idx, src)
def _segment_sum(src, seg, n):
    out = torch.zeros((n,) + src.shape[1:], dtype=src.dtype)
    return out.index_add_(0, seg, src)
def _pad(x, pw):
    flat = tuple(v for pair in reversed(pw) for v in pair)
    return torch.nn.functional.pad(x, flat)

kernel_name = 'parallel_sum__ssm_conv_s4__glu_gated_bilinear__prompt'

def setup_inputs():

    _w = (lambda a: (lambda t: t.to(torch.bfloat16) if t.is_floating_point() else t)(torch.as_tensor(a)))
    def _A_setup():
        B, L, D, N = 1, 2048, 448, 256
        A_re = -(lambda _x: torch.exp(torch.as_tensor(_x)))((lambda *s: torch.randn(*s, dtype=torch.bfloat16) * 6.4)(D, N))
        A_im = torch.pi * (lambda *s: torch.randn(*s, dtype=torch.bfloat16) * 0.05)(D, N)
        B_re = (lambda *s: torch.randn(*s, dtype=torch.bfloat16) * 0.1)(D, N)
        B_im = (lambda *s: torch.randn(*s, dtype=torch.bfloat16) * 0.1)(D, N)
        C_re = (lambda *s: torch.randn(*s, dtype=torch.bfloat16) * 0.1)(D, N)
        C_im = (lambda *s: torch.randn(*s, dtype=torch.bfloat16) * 0.1)(D, N)
        log_dt = (lambda *s: torch.randn(*s, dtype=torch.bfloat16) * 0.05)(D) * 0.5 - 4.0
        Dskip = (lambda *s: torch.randn(*s, dtype=torch.bfloat16) * 0.05)(D)
        return {
            "u": _w((lambda *s: torch.randn(*s, dtype=torch.bfloat16) * 0.05)(B, L, D)),
            "A_re": _w(A_re),
            "A_im": _w(A_im),
            "B_re": _w(B_re),
            "B_im": _w(B_im),
            "C_re": _w(C_re),
            "C_im": _w(C_im),
            "log_dt": _w(log_dt),
            "Dskip": _w(Dskip),
        }
    _A_in = _A_setup()

    def _B_setup():
        B, S, D, F = 1, 2048, 448, 1792
        return {
            "x": _w((lambda *s: torch.randn(*s, dtype=torch.bfloat16) * 0.05)(B, S, D)),
            "w_gate": _w((lambda *s: torch.randn(*s, dtype=torch.bfloat16) * 0.4)(D, F) * (D ** -0.5)),
            "w_up": _w((lambda *s: torch.randn(*s, dtype=torch.bfloat16) * 0.4)(D, F) * (D ** -0.5)),
            "w_down": _w((lambda *s: torch.randn(*s, dtype=torch.bfloat16) * 0.4)(F, D) * (F ** -0.5)),
        }
    _B_in = _B_setup()

    return {
        "A_u": _A_in["u"],
        "A_A_re": _A_in["A_re"],
        "A_A_im": _A_in["A_im"],
        "A_B_re": _A_in["B_re"],
        "A_B_im": _A_in["B_im"],
        "A_C_re": _A_in["C_re"],
        "A_C_im": _A_in["C_im"],
        "A_log_dt": _A_in["log_dt"],
        "A_Dskip": _A_in["Dskip"],
        "B_x": _B_in["x"],
        "B_w_gate": _B_in["w_gate"],
        "B_w_up": _B_in["w_up"],
        "B_w_down": _B_in["w_down"],
    }

def reference(A_u, A_A_re, A_A_im, A_B_re, A_B_im, A_C_re, A_C_im, A_log_dt, A_Dskip, B_x, B_w_gate, B_w_up, B_w_down):
    def _A_ref(u, A_re, A_im, B_re, B_im, C_re, C_im, log_dt, Dskip):
        Bsz, L, D = u.shape
        dt = torch.exp(log_dt)[:, None]
        A = A_re + 1j * A_im
        Bc = B_re + 1j * B_im
        Cc = C_re + 1j * C_im
        logdA = dt * A
        dB = dt * Bc
        l = (lambda x, dt: x.to(dt))(torch.arange(L), A_re.dtype)
        P = torch.exp(logdA[:, :, None] * l[None, None, :])
        K = torch.einsum("dn,dnl,dn->dl", Cc, P, dB).real
        L2 = 2 * L
        Kp = _pad(K, ((0, 0), (0, L)))
        up = (lambda x, *d: x.permute(*d))(u, 0, 2, 1)
        up = _pad(up, ((0, 0), (0, 0), (0, L)))
        Kf = (lambda x, axes=(-2,-1): torch.fft.rfft2(x.float(), dim=axes))(Kp[:, None, :], axes=(-2, -1))
        Uf = (lambda x, axes=(-2,-1): torch.fft.rfft2(x.float(), dim=axes))(up[:, :, None, :], axes=(-2, -1))
        Yf = Uf * Kf[None, :, :, :]
        y = (lambda x, s, axes=(-2,-1): torch.fft.irfft2(x, s=s, dim=axes).to(torch.bfloat16))(Yf, (1, L2), axes=(-2, -1))[:, :, 0, :L]
        y = (lambda x, *d: x.permute(*d))(y, 0, 2, 1) + u * Dskip[None, None, :]
        return y

    def _B_ref(x, w_gate, w_up, w_down):
        g = torch.einsum("bsd,df->bsf", x, w_gate)
        u = torch.einsum("bsd,df->bsf", x, w_up)
        h = g * u
        return torch.einsum("bsf,fd->bsd", h, w_down)

    x = A_u
    xn = _layernorm(x, axis=-1)
    return x + _A_ref(xn, A_A_re, A_A_im, A_B_re, A_B_im, A_C_re, A_C_im, A_log_dt, A_Dskip) + _B_ref(xn, B_w_gate, B_w_up, B_w_down)
```

```python
import math, struct, sys

NAME = "parallel_sum__ssm_conv_s4__glu_gated_bilinear__prompt"
XNF = 0x0
XT = 0x1C0000
STATS = 0x380000
W1F = 0x384000
WDF = 0x694000
KR = 0x81C000
HF = 0xC0C000
YT = 0x130C000
WS_END = 0x14CC000

def f32bits(x):
    return struct.unpack("<I", struct.pack("<f", x))[0]

LOG2E = 1.4426950408889634
LOG2E_HI = struct.unpack("<f", struct.pack("<f", LOG2E))[0]
LOG2E_LO = LOG2E - LOG2E_HI
INV2PI = 1.0 / (2 * math.pi)

class A:
    def __init__(self):
        self.l = []
        self.vm = []
    def e(self, s):
        self.l.append("    " + s)
    def c(self, s):
        self.l.append("    ; " + s)
    def lab(self, s):
        self.l.append(s + ":")
    def vmem(self, s, tag=None):
        self.e(s)
        self.vm.append(tag)
    def wait_vm(self, tag):
        if tag not in self.vm:
            return
        idx = max(i for i, t in enumerate(self.vm) if t == tag)
        n = len(self.vm) - 1 - idx
        assert n <= 63
        self.e(f"s_waitcnt vmcnt({n})")
        self.vm = self.vm[idx + 1:]
    def wait_vm_all(self):
        self.e("s_waitcnt vmcnt(0)")
        self.vm = []

def vr(a, n):
    return f"v[{a}:{a+n-1}]"
def sr(a, n):
    return f"s[{a}:{a+n-1}]"

P_X, P_ARE, P_AIM, P_BRE, P_BIM, P_CRE, P_CIM, P_LDT = 16, 18, 20, 22, 24, 26, 28, 30
P_DSK, P_BX, P_WG, P_WU, P_WD, P_OUT, P_DBG, P_WS = 32, 34, 36, 38, 40, 42, 44, 46
S_WAVE = 3
SRD_WS = 8

def prologue(a):
    a.e("s_load_dwordx16 s[16:31], s[0:1], 0")
    a.e("s_load_dwordx16 s[32:47], s[0:1], 64")
    a.e("v_lshrrev_b32 v1, 6, v0")
    a.e("s_nop 0")
    a.e(f"v_readfirstlane_b32 s{S_WAVE}, v1")
    a.e("v_and_b32 v1, 63, v0")
    a.e("s_waitcnt lgkmcnt(0)")
    a.e(f"s_mov_b32 s8, s{P_WS}")
    a.e(f"s_and_b32 s9, s{P_WS+1}, 0xffff")
    a.e(f"s_mov_b32 s10, {WS_END:#x}")
    a.e("s_mov_b32 s11, 0x20000")

def mk_srd(a, d, p, nbytes):
    a.e(f"s_mov_b32 s{d}, s{p}")
    a.e(f"s_and_b32 s{d+1}, s{p+1}, 0xffff")
    a.e(f"s_mov_b32 s{d+2}, {nbytes:#x}")
    a.e(f"s_mov_b32 s{d+3}, 0x20000")

ST = "sc1"

def role_ln(a):
    a.lab("L_ln")
    a.e("v_and_b32 v2, 31, v1")
    a.e("v_lshrrev_b32 v3, 5, v1")
    a.e("v_mul_u32_u24 v4, 896, v2")
    a.e("v_lshl_add_u32 v4, v3, 4, v4")
    a.e("s_mul_i32 s4, s2, 28672")
    a.e(f"s_mul_i32 s5, s{S_WAVE}, 224")
    a.e("s_add_u32 s4, s4, s5")
    a.e("v_add_u32 v4, s4, v4")
    for i in range(7):
        a.e(f"global_load_dwordx4 {vr(10+4*i,4)}, v4, {sr(P_X,2)} offset:{32*i}")
    a.e("v_lshlrev_b32 v5, 2, v0")
    a.e("v_lshlrev_b32 v6, 2, v2")
    for i in range(7):
        a.e(f"s_waitcnt vmcnt({6-i})")
        for j in range(4):
            s = 10 + 4*i + j
            d = 40 + 8*i + 2*j
            a.e(f"v_lshlrev_b32 v{d}, 16, v{s}")
            a.e(f"v_and_b32 v{d+1}, 0xffff0000, v{s}")
    for c in range(4):
        a.e(f"v_add_f32 v{96+c}, v{40+c}, v{44+c}")
    for k in range(2, 14):
        for c in range(4):
            a.e(f"v_add_f32 v{96+c}, v{96+c}, v{40+4*k+c}")
    a.e("v_add_f32 v96, v96, v97")
    a.e("v_add_f32 v98, v98, v99")
    a.e("v_add_f32 v96, v96, v98")
    a.e("ds_write_b32 v5, v96")
    a.e("s_waitcnt lgkmcnt(0)")
    a.e("s_barrier")
    for w in range(4):
        a.e(f"ds_read2_b32 {vr(100+2*w,2)}, v6 offset0:{64*w} offset1:{64*w+32}")
    a.e("s_waitcnt lgkmcnt(0)")
    a.e("v_add_f32 v100, v100, v101")
    a.e("v_add_f32 v102, v102, v103")
    a.e("v_add_f32 v104, v104, v105")
    a.e("v_add_f32 v106, v106, v107")
    a.e("v_add_f32 v100, v100, v102")
    a.e("v_add_f32 v104, v104, v106")
    a.e("v_add_f32 v100, v100, v104")
    a.e(f"v_mul_f32 v7, {f32bits(1.0/448):#x}, v100")
    for c in range(4):
        a.e(f"v_sub_f32 v{108+c}, v{40+c}, v7")
    for c in range(4):
        a.e(f"v_mul_f32 v{96+c}, v{108+c}, v{108+c}")
    for k in range(1, 14):
        for c in range(4):
            a.e(f"v_sub_f32 v{108+c}, v{40+4*k+c}, v7")
        for c in range(4):
            a.e(f"v_fmac_f32 v{96+c}, v{108+c}, v{108+c}")
    a.e("v_add_f32 v96, v96, v97")
    a.e("v_add_f32 v98, v98, v99")
    a.e("v_add_f32 v96, v96, v98")
    a.e("ds_write_b32 v5, v96 offset:1024")
    a.e("s_waitcnt lgkmcnt(0)")
    a.e("s_barrier")
    a.e("v_add_u32 v8, 1024, v6")
    for w in range(4):
        a.e(f"ds_read2_b32 {vr(100+2*w,2)}, v8 offset0:{64*w} offset1:{64*w+32}")
    a.e("s_waitcnt lgkmcnt(0)")
    a.e("v_add_f32 v100, v100, v101")
    a.e("v_add_f32 v102, v102, v103")
    a.e("v_add_f32 v104, v104, v105")
    a.e("v_add_f32 v106, v106, v107")
    a.e("v_add_f32 v100, v100, v102")
    a.e("v_add_f32 v104, v104, v106")
    a.e("v_add_f32 v100, v100, v104")
    a.e(f"v_mul_f32 v100, {f32bits(1.0/448):#x}, v100")
    a.e("v_cvt_pk_bf16_f32 v101, v7, v100")
    a.e("v_lshlrev_b32 v7, 16, v101")
    a.e("v_and_b32 v100, 0xffff0000, v101")
    a.e(f"v_add_f32 v100, {f32bits(1e-5):#x}, v100")
    a.e("v_cvt_pk_bf16_f32 v100, v100, v100")
    a.e("v_lshlrev_b32 v100, 16, v100")
    a.e("v_sqrt_f32 v100, v100")
    a.e("s_nop 0")
    a.e("v_cvt_pk_bf16_f32 v100, v100, v100")
    a.e("v_lshlrev_b32 v8, 16, v100")
    a.e("v_rcp_f32 v9, v8")
    a.e("s_nop 0")
    a.e(f"s_cmp_lg_u32 s{S_WAVE}, 0")
    a.e("s_cbranch_scc1 L_ln_nostat")
    a.e("s_mov_b64 exec, 0xffffffff")
    a.e("v_lshlrev_b32 v100, 3, v2")
    a.e("s_lshl_b32 s4, s2, 8")
    a.e(f"s_add_u32 s4, s4, {STATS:#x}")
    a.e("v_mov_b32 v102, v7")
    a.e("v_mov_b32 v103, v8")
    a.e(f"buffer_store_dwordx2 v[102:103], v100, s[8:11], s4 offen {ST}")
    a.e("s_mov_b64 exec, -1")
    a.lab("L_ln_nostat")
    for grp in range(7):
        P = [(40 + 8*grp + 2*j) for j in range(4)]
        for j in range(4):
            a.e(f"v_sub_f32 v{P[j]}, v{P[j]}, v7")
            a.e(f"v_sub_f32 v{P[j]+1}, v{P[j]+1}, v7")
        for j in range(4):
            a.e(f"v_cvt_pk_bf16_f32 v{100+j}, v{P[j]}, v{P[j]+1}")
        for j in range(4):
            a.e(f"v_lshlrev_b32 v{P[j]}, 16, v{100+j}")
            a.e(f"v_and_b32 v{P[j]+1}, 0xffff0000, v{100+j}")
        for j in range(4):
            a.e(f"v_mul_f32 v{104+2*j}, v{P[j]}, v9")
            a.e(f"v_mul_f32 v{105+2*j}, v{P[j]+1}, v9")
        for j in range(4):
            a.e(f"v_fma_f32 v{P[j]}, -v{104+2*j}, v8, v{P[j]}")
            a.e(f"v_fma_f32 v{P[j]+1}, -v{105+2*j}, v8, v{P[j]+1}")
        for j in range(4):
            a.e(f"v_fmac_f32 v{104+2*j}, v{P[j]}, v9")
            a.e(f"v_fmac_f32 v{105+2*j}, v{P[j]+1}, v9")
        for j in range(4):
            a.e(f"v_cvt_pk_bf16_f32 v{10+4*grp+j}, v{104+2*j}, v{105+2*j}")
    a.e("v_lshlrev_b32 v4, 4, v1")
    a.e("s_mul_i32 s4, s2, 28")
    a.e(f"s_mul_i32 s5, s{S_WAVE}, 7")
    a.e("s_add_u32 s4, s4, s5")
    a.e("s_lshl_b32 s4, s4, 10")
    a.e("s_add_u32 s5, s4, 4096")
    for i in range(7):
        so = "s4" if i < 4 else "s5"
        a.e(f"buffer_store_dwordx4 {vr(10+4*i,4)}, v4, s[8:11], {so} offen offset:{1024*(i%4)} {ST}")
    a.e("v_lshlrev_b32 v5, 15, v3")
    a.e("v_lshl_add_u32 v5, v2, 1, v5")
    a.e("s_lshl_b32 s4, s2, 6")
    a.e(f"s_mul_i32 s5, s{S_WAVE}, {7*16*4096}")
    a.e("s_add_u32 s4, s4, s5")
    a.e(f"s_add_u32 s4, s4, {XT:#x}")
    for i in range(7):
        for e in range(8):
            reg = 10 + 4*i + e//2
            op = "buffer_store_short" if e % 2 == 0 else "buffer_store_short_d16_hi"
            a.e(f"{op} v{reg}, v5, s[8:11], s4 offen {ST}")
            a.e(f"s_add_u32 s4, s4, {4096 if e < 7 else 4096*9}")
    a.e("s_endpgm")

def role_relayout(a):
    a.lab("L_rel")
    a.e("s_sub_u32 s4, s2, 64")
    a.e("s_lshl_b32 s4, s4, 2")
    a.e(f"s_add_u32 s4, s4, s{S_WAVE}")
    a.e("v_and_b32 v2, 31, v1")
    a.e("v_lshrrev_b32 v3, 5, v1")
    a.e("v_lshlrev_b32 v4, 4, v1")
    a.e("s_cmp_ge_u32 s4, 392")
    a.e("s_cbranch_scc1 L_rel_wd")
    mk_srd(a, 48, P_WG, 448*1792*2)
    mk_srd(a, 52, P_WU, 448*1792*2)
    a.e("s_mul_i32 s5, s4, 9363")
    a.e("s_lshr_b32 s5, s5, 16")
    a.e("s_mul_i32 s6, s5, 7")
    a.e("s_sub_u32 s6, s4, s6")
    a.e(f"s_mul_i32 s6, s6, {4*16*3584}")
    a.e("s_lshl_b32 s5, s5, 6")
    a.e("s_add_u32 s6, s6, s5")
    a.e("v_mul_u32_u24 v5, 28672, v3")
    a.e("v_lshl_add_u32 v5, v2, 1, v5")
    a.e("s_lshl_b32 s7, s4, 13")
    a.e(f"s_add_u32 s7, s7, {W1F:#x}")
    for half in range(2):
        for kk in range(2):
            for e in range(8):
                for gu in range(2):
                    reg = 32 + (kk*2+gu)*8 + e
                    a.e(f"buffer_load_ushort v{reg}, v5, s[{48+4*gu}:{51+4*gu}], s6 offen")
                a.e(f"s_add_u32 s6, s6, {3584 if e < 7 else 3584*9}")
        a.e("s_waitcnt vmcnt(0)")
        for j in range(16):
            a.e(f"v_lshl_or_b32 v{10+j}, v{33+2*j}, 16, v{32+2*j}")
        for fr in range(4):
            a.e(f"buffer_store_dwordx4 {vr(10+4*fr,4)}, v4, s[8:11], s7 offen offset:{1024*fr} {ST}")
        if half == 0:
            a.e("s_add_u32 s7, s7, 4096")
            a.e("s_nop 1")
    a.e("s_endpgm")
    a.lab("L_rel_wd")
    mk_srd(a, 48, P_WD, 1792*448*2)
    a.e("s_sub_u32 s4, s4, 392")
    a.e("s_mul_i32 s5, s4, 4682")
    a.e("s_lshr_b32 s5, s5, 16")
    a.e("s_mul_i32 s6, s5, 14")
    a.e("s_sub_u32 s6, s4, s6")
    a.e(f"s_mul_i32 s6, s6, {8*16*896}")
    a.e("s_lshl_b32 s5, s5, 6")
    a.e("s_add_u32 s6, s6, s5")
    a.e("v_mul_u32_u24 v5, 3584, v3")
    a.e("v_lshl_add_u32 v5, v2, 1, v5")
    a.e("s_lshl_b32 s7, s4, 13")
    a.e(f"s_add_u32 s7, s7, {WDF:#x}")
    for half in range(2):
        for fr in range(4):
            for e in range(8):
                reg = 32 + fr*8 + e
                a.e(f"buffer_load_ushort v{reg}, v5, s[48:51], s6 offen offset:{896*(e%4)}")
                if e == 3 or e == 7:
                    a.e("s_add_u32 s6, s6, 7168")
        a.e("s_waitcnt vmcnt(0)")
        for j in range(16):
            a.e(f"v_lshl_or_b32 v{10+j}, v{33+2*j}, 16, v{32+2*j}")
        for fr in range(4):
            a.e(f"buffer_store_dwordx4 {vr(10+4*fr,4)}, v4, s[8:11], s7 offen offset:{1024*fr} {ST}")
        if half == 0:
            a.e("s_add_u32 s7, s7, 4096")
            a.e("s_nop 1")
    a.e("s_endpgm")

def role_kgen(a):
    a.lab("L_kgen")
    a.e("s_sub_u32 s4, s2, 211")
    a.e("s_lshr_b32 s5, s4, 1")
    a.e("s_lshl_b32 s5, s5, 2")
    a.e(f"s_load_dword s6, {sr(P_LDT,2)}, s5")
    a.e("v_and_b32 v2, 15, v1")
    a.e("v_lshrrev_b32 v3, 4, v1")
    a.e("s_lshl_b32 s5, s4, 9")
    a.e(f"s_lshl_b32 s7, s{S_WAVE}, 7")
    a.e("s_add_u32 s5, s5, s7")
    a.e("v_lshlrev_b32 v11, 5, v3")
    a.e("v_add_u32 v11, s5, v11")
    PAR = 24
    ptrs = [P_ARE, P_AIM, P_BRE, P_BIM, P_CRE, P_CIM]
    for h in range(2):
        for k, p in enumerate(ptrs):
            a.e(f"global_load_dwordx4 {vr(PAR+8*k+4*h,4)}, v11, {sr(p,2)} offset:{16*h}")
    a.e("v_lshrrev_b32 v88, 3, v2")
    a.e("v_and_b32 v89, 7, v2")
    a.e("v_lshl_add_u32 v88, v88, 7, v89")
    a.e("v_cvt_f32_u32 v4, v88")
    a.e("v_lshrrev_b32 v88, 2, v2")
    a.e("v_and_b32 v89, 3, v2")
    a.e("v_lshlrev_b32 v89, 1, v89")
    a.e("v_lshl_add_u32 v88, v88, 7, v89")
    a.e("v_add_u32 v88, 256, v88")
    a.e("v_subrev_u32 v90, 8, v2")
    a.e("v_lshrrev_b32 v90, 1, v90")
    a.e("v_and_b32 v91, 1, v2")
    a.e("v_lshlrev_b32 v91, 2, v91")
    a.e("v_lshl_add_u32 v90, v90, 7, v91")
    a.e("v_add_u32 v90, 512, v90")
    a.e("v_cmp_gt_u32 vcc, 8, v2")
    a.e("s_nop 1")
    a.e("v_cndmask_b32 v88, v90, v88, vcc")
    a.e("v_cvt_f32_u32 v5, v88")
    a.e("v_lshlrev_b32 v88, 7, v2")
    a.e("v_add_u32 v88, 1024, v88")
    a.e("v_cmp_gt_u32 vcc, 9, v2")
    a.e("s_nop 1")
    a.e("v_cndmask_b32 v88, 0, v88, vcc")
    a.e("v_cvt_f32_u32 v6, v88")
    a.e("v_lshlrev_b32 v88, 3, v2")
    a.e("v_cvt_f32_u32 v7, v88")
    for i in range(12):
        a.e(f"v_mov_b32 v{12+i}, 0")
    a.e("s_waitcnt lgkmcnt(0)")
    a.e("s_and_b32 s5, s4, 1")
    a.e("s_lshl_b32 s5, s5, 4")
    a.e("s_lshr_b32 s6, s6, s5")
    a.e("s_lshl_b32 s6, s6, 16")
    a.e("v_mov_b32 v88, s6")
    a.e(f"s_mov_b32 s5, {f32bits(LOG2E_HI):#x}")
    a.e("v_mul_f32 v89, s5, v88")
    a.e("v_fma_f32 v90, v88, s5, -v89")
    a.e(f"v_fmac_f32 v90, {f32bits(LOG2E_LO):#x}, v88")
    a.e("v_exp_f32 v89, v89")
    a.e(f"v_mul_f32 v90, {f32bits(math.log(2.0)):#x}, v90")
    a.e("v_fmac_f32 v89, v89, v90")
    a.e("v_cvt_pk_bf16_f32 v89, v89, v89")
    a.e("v_lshlrev_b32 v10, 16, v89")
    a.e("v_mul_f32 v8, s5, v10")
    a.e(f"v_mul_f32 v9, {f32bits(INV2PI):#x}, v10")
    AR, AI, CR, CI = 72, 76, 80, 84
    E_, PH, SN, RE, IM, T1, T2 = 88, 92, 96, 100, 104, 108, 112
    BH, BL, AH, AL = 116, 120, 124, 128
    def unpack(dst, arr, mu):
        src = PAR + 8*arr + (mu >> 1)
        if mu & 1:
            a.e(f"v_and_b32 v{dst}, 0xffff0000, v{src}")
        else:
            a.e(f"v_lshlrev_b32 v{dst}, 16, v{src}")
    def cexp(m):
        for q in range(4): a.e(f"v_mul_f32 v{E_+q}, v{AR+q}, v{m}")
        for q in range(4): a.e(f"v_mul_f32 v{PH+q}, v{AI+q}, v{m}")
        for q in range(4): a.e(f"v_exp_f32 v{E_+q}, v{E_+q}")
        for q in range(4): a.e(f"v_fract_f32 v{PH+q}, v{PH+q}")
        for q in range(4): a.e(f"v_sin_f32 v{SN+q}, v{PH+q}")
        for q in range(4): a.e(f"v_cos_f32 v{PH+q}, v{PH+q}")
        for q in range(4): a.e(f"v_mul_f32 v{IM+q}, v{E_+q}, v{SN+q}")
        for q in range(4): a.e(f"v_mul_f32 v{RE+q}, v{E_+q}, v{PH+q}")
    def split(re, im, hi, lo):
        for q in range(4): a.e(f"v_cvt_pk_bf16_f32 v{hi+q}, v{re+q}, v{im+q}")
        for q in range(4): a.e(f"v_lshlrev_b32 v{T1+q}, 16, v{hi+q}")
        for q in range(4): a.e(f"v_and_b32 v{T2+q}, 0xffff0000, v{hi+q}")
        for q in range(4): a.e(f"v_sub_f32 v{re+q}, v{re+q}, v{T1+q}")
        for q in range(4): a.e(f"v_sub_f32 v{im+q}, v{im+q}, v{T2+q}")
        for q in range(4): a.e(f"v_cvt_pk_bf16_f32 v{lo+q}, v{re+q}, v{im+q}")
    for s in range(4):
        if s == 0:
            a.e("s_waitcnt vmcnt(6)")
        if s == 2:
            a.e("s_waitcnt vmcnt(0)")
        for q in range(4): unpack(AR+q, 0, 4*s+q)
        for q in range(4): unpack(AI+q, 1, 4*s+q)
        for q in range(4): unpack(E_+q, 2, 4*s+q)
        for q in range(4): unpack(PH+q, 3, 4*s+q)
        for q in range(4): unpack(SN+q, 4, 4*s+q)
        for q in range(4): unpack(RE+q, 5, 4*s+q)
        for q in range(4): a.e(f"v_mul_f32 v{AR+q}, v{AR+q}, v8")
        for q in range(4): a.e(f"v_mul_f32 v{AI+q}, v{AI+q}, v9")
        for q in range(4): a.e(f"v_mul_f32 v{CR+q}, v{SN+q}, v{E_+q}")
        for q in range(4): a.e(f"v_mul_f32 v{CI+q}, v{SN+q}, v{PH+q}")
        for q in range(4): a.e(f"v_fma_f32 v{CR+q}, -v{RE+q}, v{PH+q}, v{CR+q}")
        for q in range(4): a.e(f"v_fmac_f32 v{CI+q}, v{RE+q}, v{E_+q}")
        for q in range(4): a.e(f"v_mul_f32 v{CR+q}, v{CR+q}, v10")
        for q in range(4): a.e(f"v_mul_f32 v{CI+q}, v{CI+q}, v10")
        cexp(7)
        for q in range(4): a.e(f"v_mul_f32 v{E_+q}, v{CR+q}, v{RE+q}")
        for q in range(4): a.e(f"v_mul_f32 v{PH+q}, v{CI+q}, v{RE+q}")
        for q in range(4): a.e(f"v_fma_f32 v{E_+q}, -v{CI+q}, v{IM+q}, v{E_+q}")
        for q in range(4): a.e(f"v_fma_f32 v{PH+q}, -v{CR+q}, v{IM+q}, -v{PH+q}")
        split(E_, PH, BH, BL)
        for t in range(3):
            cexp(4+t)
            split(RE, IM, AH, AL)
            a.e("s_nop 1")
            acc = vr(12+4*t, 4)
            a.e(f"v_mfma_f32_16x16x32_bf16 {acc}, {vr(AH,4)}, {vr(BH,4)}, {acc}")
            a.e(f"v_mfma_f32_16x16x32_bf16 {acc}, {vr(AH,4)}, {vr(BL,4)}, {acc}")
            a.e(f"v_mfma_f32_16x16x32_bf16 {acc}, {vr(AL,4)}, {vr(BH,4)}, {acc}")
    a.e("v_lshlrev_b32 v88, 6, v2")
    a.e("v_lshl_add_u32 v88, v3, 4, v88")
    a.e(f"s_mul_i32 s5, s{S_WAVE}, 3072")
    a.e("v_add_u32 v88, s5, v88")
    a.e("s_nop 7")
    for t in range(3):
        a.e(f"ds_write_b128 v88, {vr(12+4*t,4)} offset:{1024*t}")
    a.e("v_lshlrev_b32 v24, 3, v0")
    a.e("v_sub_u32 v24, 2047, v24")
    for i in range(8):
        a.e(f"v_subrev_u32 v{32+i}, {i}, v24")
    for i in range(8): a.e(f"v_cvt_f32_u32 v{32+i}, v{32+i}")
    for i in range(8): a.e(f"v_cvt_pk_bf16_f32 v{32+i}, v{32+i}, v{32+i}")
    for i in range(8): a.e(f"v_lshlrev_b32 v{32+i}, 16, v{32+i}")
    for i in range(8): a.e(f"v_bfe_u32 v{40+i}, v{32+i}, 23, 8")
    for i in range(8): a.e(f"v_cvt_u32_f32 v{32+i}, v{32+i}")
    for i in range(8): a.e(f"v_subrev_u32 v{40+i}, 134, v{40+i}")
    for i in range(8): a.e(f"v_med3_i32 v{40+i}, v{40+i}, 0, 3")
    for i in range(8): a.e(f"v_lshrrev_b32 v{48+i}, 7, v{32+i}")
    for i in range(8): a.e(f"v_sub_u32 v{56+i}, 3, v{40+i}")
    for i in range(8): a.e(f"v_lshlrev_b32 v{48+i}, v{56+i}, v{48+i}")
    for i in range(8): a.e(f"v_and_b32 v{56+i}, 7, v{32+i}")
    for i in range(8): a.e(f"v_lshrrev_b32 v{56+i}, v{40+i}, v{56+i}")
    for i in range(8): a.e(f"v_lshl_add_u32 v{48+i}, v{40+i}, 3, v{48+i}")
    for i in range(8): a.e(f"v_add_u32 v{48+i}, v{48+i}, v{56+i}")
    for i in range(8): a.e(f"v_bfe_u32 v{56+i}, v{32+i}, 3, 4")
    for i in range(8): a.e(f"v_lshrrev_b32 v{40+i}, 4, v{48+i}")
    for i in range(8): a.e(f"v_and_b32 v{48+i}, 15, v{48+i}")
    for i in range(8): a.e(f"v_lshl_add_u32 v{48+i}, v{56+i}, 4, v{48+i}")
    for i in range(8): a.e(f"v_lshl_add_u32 v{48+i}, v{40+i}, 8, v{48+i}")
    for i in range(8): a.e(f"v_lshlrev_b32 v{48+i}, 2, v{48+i}")
    a.e("s_waitcnt lgkmcnt(0)")
    a.e("s_barrier")
    for w in range(4):
        for i in range(8):
            a.e(f"ds_read_b32 v{64+8*w+i}, v{48+i} offset:{3072*w}")
        a.e("s_waitcnt lgkmcnt(0)")
    for i in range(8): a.e(f"v_add_f32 v{64+i}, v{64+i}, v{72+i}")
    for i in range(8): a.e(f"v_add_f32 v{80+i}, v{80+i}, v{88+i}")
    for i in range(8): a.e(f"v_add_f32 v{64+i}, v{64+i}, v{80+i}")
    for j in range(4): a.e(f"v_cvt_pk_bf16_f32 v{96+j}, v{64+2*j}, v{65+2*j}")
    for j in range(4):
        a.e(f"v_lshlrev_b32 v{72+2*j}, 16, v{96+j}")
        a.e(f"v_and_b32 v{73+2*j}, 0xffff0000, v{96+j}")
    for i in range(8): a.e(f"v_sub_f32 v{64+i}, v{64+i}, v{72+i}")
    for j in range(4): a.e(f"v_cvt_pk_bf16_f32 v{100+j}, v{64+2*j}, v{65+2*j}")
    a.e("v_lshlrev_b32 v24, 4, v0")
    a.e("s_mul_i32 s5, s4, 9216")
    a.e(f"s_add_u32 s5, s5, {KR:#x}")
    a.e("s_add_u32 s6, s5, 4608")
    a.e(f"buffer_store_dwordx4 v[96:99], v24, s[8:11], s5 offen {ST}")
    a.e(f"buffer_store_dwordx4 v[100:103], v24, s[8:11], s6 offen {ST}")
    a.e(f"s_cmp_lg_u32 s{S_WAVE}, 0")
    a.e("s_cbranch_scc1 L_kgen_end")
    for j in range(4): a.e(f"v_mov_b32 v{104+j}, 0")
    a.e("s_mov_b64 exec, 0xffffffff")
    a.e("s_add_u32 s5, s5, 4096")
    a.e("s_add_u32 s6, s6, 4096")
    a.e(f"buffer_store_dwordx4 v[104:107], v24, s[8:11], s5 offen {ST}")
    a.e(f"buffer_store_dwordx4 v[104:107], v24, s[8:11], s6 offen {ST}")
    a.lab("L_kgen_end")
    a.e("s_endpgm")

def kernel1(a):
    a.lab("prep_kernel")
    prologue(a)
    a.e("s_cmp_lt_u32 s2, 64")
    a.e("s_cbranch_scc1 L_ln")
    a.e("s_cmp_lt_u32 s2, 211")
    a.e("s_cbranch_scc1 L_rel")
    a.e("s_cmp_lt_u32 s2, 659")
    a.e("s_cbranch_scc1 L_kgen")
    a.e("s_endpgm")
    role_ln(a)
    role_relayout(a)
    role_kgen(a)

def role_gemm1(a):
    a.lab("L_g1")
    a.vm = []
    a.e("s_and_b32 s4, s2, 7")
    a.e("s_lshr_b32 s5, s2, 3")
    a.e("s_mul_i32 s6, s5, 9363")
    a.e("s_lshr_b32 s6, s6, 16")
    a.e("s_mul_i32 s7, s6, 7")
    a.e("s_sub_u32 s5, s5, s7")
    a.e("s_and_b32 s7, s4, 1")
    a.e("s_mul_i32 s7, s7, 7")
    a.e("s_add_u32 s5, s5, s7")
    a.e("s_lshr_b32 s4, s4, 1")
    a.e("s_lshl_b32 s4, s4, 2")
    a.e("s_add_u32 s4, s4, s6")
    a.e("s_lshl_b32 s5, s5, 2")
    a.e(f"s_add_u32 s5, s5, s{S_WAVE}")
    a.e("s_mul_i32 s12, s5, 57344")
    a.e(f"s_add_u32 s12, s12, {W1F:#x}")
    a.e("s_lshl_b32 s6, s4, 2")
    a.e(f"s_add_u32 s6, s6, s{S_WAVE}")
    a.e("s_mul_i32 s13, s6, 28672")
    a.e(f"s_mul_i32 s14, s{S_WAVE}, 7168")
    a.e("v_lshlrev_b32 v2, 4, v1")
    ACC = 64
    BF = 192
    AF = 224
    def dma(chunk):
        buf = chunk & 1
        a.e(f"s_add_u32 s15, s14, {buf*28672}")
        a.e("s_mov_b32 m0, s15")
        a.e("s_nop 0")
        for i in range(4):
            a.vmem(f"buffer_load_dwordx4 v2, s[8:11], s13 offen offset:{1024*i} lds", f"dma{chunk}")
        a.e("s_add_u32 s15, s15, 4096")
        a.e("s_add_u32 s13, s13, 4096")
        a.e("s_mov_b32 m0, s15")
        a.e("s_nop 0")
        for i in range(3):
            a.vmem(f"buffer_load_dwordx4 v2, s[8:11], s13 offen offset:{1024*i} lds", f"dma{chunk}")
        a.e("s_add_u32 s13, s13, 3072")
    def loadA(k):
        st = k % 4
        a.vmem(f"buffer_load_dwordx4 {vr(AF+8*st,4)}, v2, s[8:11], s12 offen", f"A{k}")
        a.vmem(f"buffer_load_dwordx4 {vr(AF+8*st+4,4)}, v2, s[8:11], s12 offen offset:1024", f"A{k}")
        a.e("s_add_u32 s12, s12, 2048")
    def readB(k):
        chunk, kk = divmod(k, 7)
        st = k & 1
        for t in range(4):
            a.e(f"ds_read_b128 {vr(BF+16*st+4*t,4)}, v2 offset:{(chunk&1)*28672 + t*7168 + kk*1024}")
    dma(0)
    for k in range(4):
        loadA(k)
    dma(1)
    a.wait_vm("dma0")
    a.e("s_barrier")
    readB(0)
    for k in range(28):
        chunk, kk = divmod(k, 7)
        st = k & 1
        last_in_chunk = (kk == 6)
        if not last_in_chunk:
            readB(k+1)
            a.wait_vm(f"A{k}")
            a.e("s_waitcnt lgkmcnt(4)")
        else:
            a.wait_vm(f"A{k}")
            a.e("s_waitcnt lgkmcnt(0)")
        for t in range(4):
            for gu in range(2):
                acc = vr(ACC + 64*gu + 16*t, 16)
                src = acc if k > 0 else "0"
                a.e(f"v_mfma_f32_32x32x16_bf16 {acc}, {vr(AF+8*(k%4)+4*gu,4)}, {vr(BF+16*st+4*t,4)}, {src}")
        if k + 4 < 28:
            loadA(k+4)
        if last_in_chunk and chunk < 3:
            a.wait_vm(f"dma{chunk+1}")
            a.e("s_barrier")
            if chunk + 2 < 4:
                dma(chunk+2)
            readB(k+1)
    a.e("s_nop 15")
    a.e("s_nop 3")
    a.e("s_mul_i32 s6, s4, 458752")
    a.e("s_lshl_b32 s7, s5, 11")
    a.e("s_add_u32 s6, s6, s7")
    a.e(f"s_add_u32 s6, s6, {HF:#x}")
    for t in range(4):
        G = ACC + 16*t
        U = ACC + 64 + 16*t
        for s in range(2):
            out = 4 + 4*(2*t+s) if False else (4 + 8*(t&1) + 4*s)
            for j in range(4):
                v = 8*s + 2*j
                a.e(f"v_cvt_pk_bf16_f32 v{G+v}, v{G+v}, v{G+v+1}")
                a.e(f"v_cvt_pk_bf16_f32 v{U+v}, v{U+v}, v{U+v+1}")
            for j in range(4):
                v = 8*s + 2*j
                a.e(f"v_and_b32 v{G+v+1}, 0xffff0000, v{G+v}")
                a.e(f"v_and_b32 v{U+v+1}, 0xffff0000, v{U+v}")
                a.e(f"v_lshlrev_b32 v{G+v}, 16, v{G+v}")
                a.e(f"v_lshlrev_b32 v{U+v}, 16, v{U+v}")
            for j in range(4):
                v = 8*s + 2*j
                a.e(f"v_mul_f32 v{G+v}, v{G+v}, v{U+v}")
                a.e(f"v_mul_f32 v{G+v+1}, v{G+v+1}, v{U+v+1}")
            for j in range(4):
                v = 8*s + 2*j
                a.e(f"v_cvt_pk_bf16_f32 v{out+j}, v{G+v}, v{G+v+1}")
            a.e(f"buffer_store_dwordx4 {vr(out,4)}, v2, s[8:11], s6 offen offset:{1024*s} {ST}")
        a.e(f"s_add_u32 s6, s6, {112*1024}")
    a.e("s_endpgm")

U_STRIDE = 4112
R_BASE = 8 * U_STRIDE
def role_conv(a):
    a.lab("L_conv")
    a.e("s_sub_u32 s4, s2, 224")
    a.e("s_lshl_b32 s5, s4, 12")
    a.e(f"s_add_u32 s5, s5, {XT:#x}")
    a.e(f"s_add_u32 s48, s{P_WS}, s5")
    a.e(f"s_addc_u32 s49, s{P_WS+1}, 0")
    a.e("s_and_b32 s49, s49, 0xffff")
    a.e("s_mov_b32 s50, 4096")
    a.e("s_mov_b32 s51, 0x20000")
    a.e("v_lshlrev_b32 v2, 4, v0")
    a.e("v_subrev_u32 v3, 32, v2")
    a.e("buffer_load_dwordx4 v[8:11], v3, s[48:51], 0 offen")
    a.e("v_subrev_u32 v4, 16, v2")
    a.e("buffer_load_dwordx4 v[12:15], v4, s[48:51], 0 offen")
    a.e("v_mov_b32 v4, 4064")
    a.e("buffer_load_dwordx4 v[16:19], v4, s[48:51], 0 offen")
    a.e("buffer_load_dwordx4 v[20:23], v4, s[48:51], 0 offen offset:16")
    a.e("s_mul_i32 s5, s4, 9216")
    a.e(f"s_add_u32 s5, s5, {KR:#x}")
    a.e(f"s_lshl_b32 s6, s{S_WAVE}, 11")
    a.e("s_add_u32 s5, s5, s6")
    a.e(f"s_add_u32 s6, s6, {R_BASE}")
    a.e("s_mov_b32 m0, s6")
    a.e("v_lshlrev_b32 v5, 4, v1")
    a.e("buffer_load_dwordx4 v5, s[8:11], s5 offen lds")
    a.e("buffer_load_dwordx4 v5, s[8:11], s5 offen offset:1024 lds")
    a.e(f"s_cmp_lg_u32 s{S_WAVE}, 0")
    a.e("s_cbranch_scc1 L_conv_k9")
    a.e("s_add_u32 s5, s5, 8192")
    a.e(f"s_mov_b32 m0, {R_BASE+8192}")
    a.e("s_nop 0")
    a.e("buffer_load_dwordx4 v5, s[8:11], s5 offen lds")
    a.lab("L_conv_k9")
    def build(W, addr_v, off):
        for sg in range(8):
            o = 24 + 4*(sg & 1)
            if sg & 1:
                b = W + (1+sg)//2
                for i in range(4):
                    a.e(f"v_mov_b32 v{o+i}, v{b+i}")
            else:
                b = W + sg//2
                for i in range(4):
                    a.e(f"v_alignbit_b32 v{o+i}, v{b+i+1}, v{b+i}, 16")
            a.e(f"ds_write_b128 v{addr_v}, {vr(o,4)} offset:{sg*U_STRIDE + off}")
    a.e("s_waitcnt vmcnt(4)")
    build(8, 2, 0)
    a.e("s_waitcnt vmcnt(0)")
    a.e("v_cmp_eq_u32 vcc, 0, v0")
    a.e("s_and_saveexec_b64 s[6:7], vcc")
    a.e("s_cbranch_execz L_conv_notail")
    build(16, 2, 4096)
    a.lab("L_conv_notail")
    a.e("s_mov_b64 exec, -1")
    a.e("v_and_b32 v6, 7, v1")
    a.e(f"v_mul_u32_u24 v6, {U_STRIDE}, v6")
    a.e("v_lshrrev_b32 v7, 4, v1")
    a.e("v_bfe_u32 v8, v1, 3, 1")
    a.e("v_add_u32 v8, v8, v7")
    a.e("v_lshl_add_u32 v6, v8, 4, v6")
    a.e(f"s_lshl_b32 s6, s{S_WAVE}, 7")
    a.e("v_add_u32 v6, s6, v6")
    a.e("v_and_b32 v8, 15, v1")
    a.e("v_lshlrev_b32 v8, 5, v8")
    a.e("v_lshlrev_b32 v9, 4, v7")
    a.e("v_sub_u32 v9, v9, v8")
    a.e(f"s_add_u32 s6, s6, {R_BASE + 4064 - 3584}")
    a.e("v_add_u32 v9, s6, v9")
    a.e("s_waitcnt lgkmcnt(0)")
    a.e("s_barrier")
    AFR, BH, BL, D = 16, 48, 80, 112
    def ldA(rr, m):
        a.e(f"ds_read_b128 {vr(AFR+4*m,4)}, v6 offset:{512*m + 64*rr}")
    def ldB(rr, wp):
        a.e(f"ds_read_b128 {vr(BH+4*wp,4)}, v9 offset:{512*(7-wp) + 64*rr}")
        a.e(f"ds_read_b128 {vr(BL+4*wp,4)}, v9 offset:{512*(7-wp) + 64*rr + 4608}")
    for m in range(4): ldA(0, m)
    for wp in range(4): ldB(0, wp)
    a.e("s_waitcnt lgkmcnt(0)")
    for m in range(4, 8): ldA(0, m)
    for wp in range(4, 8): ldB(0, wp)
    a.e("s_waitcnt lgkmcnt(0)")
    for rr in range(2):
        for m in range(8):
            for c in range(7, m-1, -1):
                acc = vr(D+4*c, 4)
                first = (rr == 0 and m == 0)
                a.e(f"v_mfma_f32_16x16x32_bf16 {acc}, {vr(AFR+4*m,4)}, {vr(BH+4*(c-m),4)}, {'0' if first else acc}")
            for c in range(7, m-1, -1):
                acc = vr(D+4*c, 4)
                a.e(f"v_mfma_f32_16x16x32_bf16 {acc}, {vr(AFR+4*m,4)}, {vr(BL+4*(c-m),4)}, {acc}")
            if rr == 0:
                ldA(1, m)
                ldB(1, 7-m)
                if m == 3:
                    a.e("s_waitcnt lgkmcnt(0)")
        if rr == 0:
            a.e("s_waitcnt lgkmcnt(0)")
    a.e("s_barrier")
    a.e("v_and_b32 v8, 15, v1")
    a.e("v_lshlrev_b32 v8, 6, v8")
    a.e("v_lshl_add_u32 v8, v7, 4, v8")
    a.e(f"s_lshl_b32 s6, s{S_WAVE}, 13")
    a.e("v_add_u32 v8, s6, v8")
    a.e("s_nop 7")
    for c in range(8):
        a.e(f"ds_write_b128 v8, {vr(D+4*c,4)} offset:{1024*c}")
    a.e("v_lshlrev_b32 v9, 5, v0")
    a.e("s_waitcnt lgkmcnt(0)")
    a.e("s_barrier")
    for w in range(4):
        a.e(f"ds_read_b128 {vr(16+8*w,4)}, v9 offset:{8192*w}")
        a.e(f"ds_read_b128 {vr(20+8*w,4)}, v9 offset:{8192*w+16}")
    a.e("s_waitcnt lgkmcnt(0)")
    for i in range(8): a.e(f"v_add_f32 v{16+i}, v{16+i}, v{24+i}")
    for i in range(8): a.e(f"v_add_f32 v{32+i}, v{32+i}, v{40+i}")
    for i in range(8): a.e(f"v_add_f32 v{16+i}, v{16+i}, v{32+i}")
    for j in range(4): a.e(f"v_cvt_pk_bf16_f32 v{48+j}, v{16+2*j}, v{17+2*j}")
    a.e("s_lshl_b32 s5, s4, 12")
    a.e(f"s_add_u32 s5, s5, {YT:#x}")
    a.e(f"buffer_store_dwordx4 v[48:51], v2, s[8:11], s5 offen {ST}")
    a.e("s_endpgm")

def kernel2(a):
    a.lab("mid_kernel")
    prologue(a)
    a.e("s_cmp_lt_u32 s2, 224")
    a.e("s_cbranch_scc1 L_g1")
    a.e("s_cmp_lt_u32 s2, 672")
    a.e("s_cbranch_scc1 L_conv")
    a.e("s_endpgm")
    role_gemm1(a)
    role_conv(a)

RSTR = 272
def kernel3(a):
    a.lab("fin_kernel")
    a.e("s_cmp_ge_u32 s2, 224")
    a.e("s_cbranch_scc1 L_fin_end")
    prologue(a)
    a.vm = []
    a.e("s_and_b32 s4, s2, 7")
    a.e("s_lshr_b32 s5, s2, 3")
    a.e("s_mul_i32 s6, s5, 9363")
    a.e("s_lshr_b32 s6, s6, 16")
    a.e("s_mul_i32 s7, s6, 7")
    a.e("s_sub_u32 s5, s5, s7")
    a.e("s_lshl_b32 s4, s4, 2")
    a.e("s_add_u32 s4, s4, s6")
    a.e("v_lshlrev_b32 v2, 4, v1")
    a.e(f"s_mul_i32 s6, s{S_WAVE}, 28672")
    a.e("s_mul_i32 s12, s5, 229376")
    a.e("s_add_u32 s12, s12, s6")
    a.e(f"s_add_u32 s12, s12, {WDF:#x}")
    a.e("s_add_u32 s13, s12, 114688")
    a.e("s_mul_i32 s14, s4, 229376")
    a.e("s_add_u32 s14, s14, s6")
    a.e(f"s_add_u32 s14, s14, {HF:#x}")
    a.e("s_add_u32 s15, s14, 114688")
    ACC = 64
    FR = 128
    DEPTH = 6
    def load(k):
        st = k % DEPTH
        off = (k % 4) * 1024
        for i, sreg in enumerate((12, 13, 14, 15)):
            a.vmem(f"buffer_load_dwordx4 {vr(FR+16*st+4*i,4)}, v2, s[8:11], s{sreg} offen offset:{off}", f"F{k}")
        if k % 4 == 3:
            for sreg in (12, 13, 14, 15):
                a.e(f"s_add_u32 s{sreg}, s{sreg}, 4096")
    for k in range(DEPTH-1):
        load(k)
    a.e("v_lshrrev_b32 v3, 2, v0")
    a.e("v_and_b32 v4, 3, v0")
    a.e("s_lshl_b32 s6, s4, 6")
    a.e("v_add_u32 v5, s6, v3")
    a.e("s_lshl_b32 s7, s5, 6")
    a.e("v_lshl_add_u32 v6, v4, 4, s7")
    a.e("v_mul_u32_u24 v7, 896, v5")
    a.e("v_lshl_add_u32 v7, v6, 1, v7")
    a.vmem(f"global_load_dwordx4 v[8:11], v7, {sr(P_X,2)}", "E")
    a.vmem(f"global_load_dwordx4 v[12:15], v7, {sr(P_X,2)} offset:16", "E")
    a.e("v_lshlrev_b32 v16, 1, v6")
    a.vmem(f"global_load_dwordx4 v[20:23], v16, {sr(P_DSK,2)}", "E")
    a.vmem(f"global_load_dwordx4 v[24:27], v16, {sr(P_DSK,2)} offset:16", "E")
    a.e("v_lshlrev_b32 v16, 3, v5")
    a.e(f"s_mov_b32 s6, {STATS:#x}")
    a.vmem("buffer_load_dwordx2 v[28:29], v16, s[8:11], s6 offen", "E")
    a.e("v_lshlrev_b32 v16, 12, v6")
    a.e("v_lshl_add_u32 v16, v5, 1, v16")
    a.e(f"s_mov_b32 s6, {YT:#x}")
    for i in range(16):
        a.vmem(f"buffer_load_ushort v{44+i}, v16, s[8:11], s6 offen", "E")
        a.e("s_add_u32 s6, s6, 4096")
    for k in range(28):
        if k + DEPTH - 1 < 28:
            load(k + DEPTH - 1)
        a.wait_vm(f"F{k}")
        st = k % DEPTH
        for di in range(2):
            for ti in range(2):
                acc = vr(ACC + 32*di + 16*ti, 16)
                src = acc if k > 0 else "0"
                a.e(f"v_mfma_f32_32x32x16_bf16 {acc}, {vr(FR+16*st+4*di,4)}, {vr(FR+16*st+8+4*ti,4)}, {src}")
    a.e("v_and_b32 v40, 31, v1")
    a.e("v_lshrrev_b32 v41, 5, v1")
    a.e(f"v_mul_u32_u24 v40, {RSTR}, v40")
    a.e("v_lshl_add_u32 v40, v41, 4, v40")
    a.e(f"s_mul_i32 s6, s{S_WAVE}, {64*RSTR}")
    a.e("v_add_u32 v40, s6, v40")
    a.e("s_nop 15")
    for di in range(2):
        for ti in range(2):
            for vg in range(4):
                a.e(f"ds_write_b128 v40, {vr(ACC+32*di+16*ti+4*vg,4)} offset:{ti*32*RSTR + di*128 + vg*32}")
    a.e(f"v_mul_u32_u24 v41, {RSTR}, v3")
    a.e("v_lshl_add_u32 v41, v4, 6, v41")
    a.e("s_waitcnt lgkmcnt(0)")
    a.e("s_barrier")
    for w in range(4):
        for j in range(4):
            a.e(f"ds_read_b128 {vr(64+16*w+4*j,4)}, v41 offset:{w*64*RSTR + 16*j}")
        if w % 2 == 1:
            a.e("s_waitcnt lgkmcnt(0)")
    for i in range(16): a.e(f"v_add_f32 v{64+i}, v{64+i}, v{80+i}")
    for i in range(16): a.e(f"v_add_f32 v{96+i}, v{96+i}, v{112+i}")
    for i in range(16): a.e(f"v_add_f32 v{64+i}, v{64+i}, v{96+i}")
    a.wait_vm_all()
    a.e("v_rcp_f32 v30, v29")
    X0, X1, Q0, Q1, D0, D1 = 80, 88, 96, 104, 112, 120
    for j in range(8):
        a.e(f"v_lshlrev_b32 v{X0+j}, 16, v{8+j}")
        a.e(f"v_and_b32 v{X1+j}, 0xffff0000, v{8+j}")
    for j in range(8):
        a.e(f"v_sub_f32 v{Q0+j}, v{X0+j}, v28")
        a.e(f"v_sub_f32 v{Q1+j}, v{X1+j}, v28")
    for j in range(8):
        a.e(f"v_cvt_pk_bf16_f32 v{8+j}, v{Q0+j}, v{Q1+j}")
    for j in range(8):
        a.e(f"v_lshlrev_b32 v{D0+j}, 16, v{8+j}")
        a.e(f"v_and_b32 v{D1+j}, 0xffff0000, v{8+j}")
    for j in range(8):
        a.e(f"v_mul_f32 v{Q0+j}, v{D0+j}, v30")
        a.e(f"v_mul_f32 v{Q1+j}, v{D1+j}, v30")
    for j in range(8):
        a.e(f"v_fma_f32 v{D0+j}, -v{Q0+j}, v29, v{D0+j}")
        a.e(f"v_fma_f32 v{D1+j}, -v{Q1+j}, v29, v{D1+j}")
    for j in range(8):
        a.e(f"v_fmac_f32 v{Q0+j}, v{D0+j}, v30")
        a.e(f"v_fmac_f32 v{Q1+j}, v{D1+j}, v30")
    for j in range(8):
        a.e(f"v_cvt_pk_bf16_f32 v{8+j}, v{Q0+j}, v{Q1+j}")
    for j in range(8):
        a.e(f"v_lshlrev_b32 v{Q0+j}, 16, v{8+j}")
        a.e(f"v_and_b32 v{Q1+j}, 0xffff0000, v{8+j}")
        a.e(f"v_lshlrev_b32 v{D0+j}, 16, v{20+j}")
        a.e(f"v_and_b32 v{D1+j}, 0xffff0000, v{20+j}")
    for j in range(8):
        a.e(f"v_mul_f32 v{Q0+j}, v{Q0+j}, v{D0+j}")
        a.e(f"v_mul_f32 v{Q1+j}, v{Q1+j}, v{D1+j}")
    for j in range(8):
        a.e(f"v_cvt_pk_bf16_f32 v{8+j}, v{Q0+j}, v{Q1+j}")
    for j in range(8):
        a.e(f"v_lshlrev_b32 v{Q0+j}, 16, v{8+j}")
        a.e(f"v_and_b32 v{Q1+j}, 0xffff0000, v{8+j}")
        a.e(f"v_lshlrev_b32 v{D0+j}, 16, v{44+2*j}")
        a.e(f"v_lshlrev_b32 v{D1+j}, 16, v{45+2*j}")
    for j in range(8):
        a.e(f"v_add_f32 v{Q0+j}, v{Q0+j}, v{D0+j}")
        a.e(f"v_add_f32 v{Q1+j}, v{Q1+j}, v{D1+j}")
    for j in range(8):
        a.e(f"v_cvt_pk_bf16_f32 v{8+j}, v{Q0+j}, v{Q1+j}")
    for j in range(8):
        a.e(f"v_lshlrev_b32 v{Q0+j}, 16, v{8+j}")
        a.e(f"v_and_b32 v{Q1+j}, 0xffff0000, v{8+j}")
    for j in range(8):
        a.e(f"v_add_f32 v{Q0+j}, v{X0+j}, v{Q0+j}")
        a.e(f"v_add_f32 v{Q1+j}, v{X1+j}, v{Q1+j}")
    for j in range(8):
        a.e(f"v_cvt_pk_bf16_f32 v{8+j}, v{Q0+j}, v{Q1+j}")
        a.e(f"v_cvt_pk_bf16_f32 v{20+j}, v{64+2*j}, v{65+2*j}")
    for j in range(8):
        a.e(f"v_lshlrev_b32 v{Q0+j}, 16, v{8+j}")
        a.e(f"v_and_b32 v{Q1+j}, 0xffff0000, v{8+j}")
        a.e(f"v_lshlrev_b32 v{D0+j}, 16, v{20+j}")
        a.e(f"v_and_b32 v{D1+j}, 0xffff0000, v{20+j}")
    for j in range(8):
        a.e(f"v_add_f32 v{Q0+j}, v{Q0+j}, v{D0+j}")
        a.e(f"v_add_f32 v{Q1+j}, v{Q1+j}, v{D1+j}")
    for j in range(8):
        a.e(f"v_cvt_pk_bf16_f32 v{8+j}, v{Q0+j}, v{Q1+j}")
    a.e(f"global_store_dwordx4 v7, v[8:11], {sr(P_OUT,2)}")
    a.e(f"global_store_dwordx4 v7, v[12:15], {sr(P_OUT,2)} offset:16")
    a.lab("L_fin_end")
    a.e("s_endpgm")

def descriptor(name, vgpr):
    acc = (vgpr + 3) // 4 * 4
    return f""".amdhsa_kernel {name}
  .amdhsa_next_free_vgpr {vgpr}
  .amdhsa_next_free_sgpr 64
  .amdhsa_accum_offset {acc}
  .amdhsa_group_segment_fixed_size 0
  .amdhsa_kernarg_size 128
  .amdhsa_user_sgpr_count 2
  .amdhsa_user_sgpr_kernarg_segment_ptr 1
  .amdhsa_system_sgpr_workgroup_id_x 1
.end_amdhsa_kernel
"""

def main():
    ref = open(f"cdna_kernels/{NAME}.s.ref").read().splitlines()
    header = [l for l in ref if l.startswith(";") and "@launch" not in l and "Override launch" not in l and "grid=ceil" not in l]
    out = list(header)
    out.append("; @launch kernel=prep_kernel grid=(659,1,1) block=(256,1,1) lds=12288")
    out.append("; @launch kernel=mid_kernel grid=(672,1,1) block=(256,1,1) lds=57344")
    out.append(f"; @launch kernel=fin_kernel grid=(224,1,1) block=(256,1,1) lds={4*64*RSTR}")
    out.append('.amdgcn_target "amdgcn-amd-amdhsa--gfx950"')
    out.append(".text")
    for name, fn in (("prep_kernel", kernel1), ("mid_kernel", kernel2), ("fin_kernel", kernel3)):
        a = A()
        out.append(f".globl {name}")
        out.append(".p2align 8")
        out.append(f".type {name},@function")
        fn(a)
        out += a.l
    out.append('.section .rodata,"a"')
    out.append(".p2align 6")
    out.append(descriptor("prep_kernel", 132))
    out.append(".p2align 6")
    out.append(descriptor("mid_kernel", 256))
    out.append(".p2align 6")
    out.append(descriptor("fin_kernel", 224))
    dst = sys.argv[1] if len(sys.argv) > 1 else f"cdna_kernels/{NAME}.s"
    open(dst, "w").write("\n".join(out) + "\n")

if __name__ == "__main__":
    main()
```
